```python
import torch

def _softmax(x, axis=-1):
    return torch.softmax(x, dim=axis)
def _gelu(x):
    return torch.nn.functional.gelu(x, approximate="tanh")
def _silu(x):
    return torch.nn.functional.silu(x)
def _sigmoid(x):
    return torch.sigmoid(x)
def _layernorm(x, axis=-1, eps=1e-5):
    m = x.mean(dim=axis, keepdim=True)
    v = x.var(dim=axis, keepdim=True, unbiased=False)
    return (x - m) / torch.sqrt(v + eps)
def _scatter_add(tgt, idx, src, axis=0):
    return tgt.clone().index_add_(axis, idx, src)
def _segment_sum(src, seg, n):
    out = torch.zeros((n,) + src.shape[1:], dtype=src.dtype)
    return out.index_add_(0, seg, src)
def _pad(x, pw):
    flat = tuple(v for pair in reversed(pw) for v in pair)
    return torch.nn.functional.pad(x, flat)

kernel_name = 'sequential_preLN__gqa_block_cached__dense_activation_squared_relu__decode'

def setup_inputs():

    _w = (lambda a: (lambda t: t.to(torch.bfloat16) if t.is_floating_point() else t)(torch.as_tensor(a)))
    def _A_setup():
        B, Sq, D = 4, 1, 512
        Hq, Hkv, Sk, Dh = 32, 8, 8192, 128
        assert Hq % Hkv == 0, (Hq, Hkv)
        return {
            "x": _w((lambda *s: torch.randn(*s, dtype=torch.bfloat16) * 0.05)(B, Sq, D)),
            "k_cache": _w((lambda *s: torch.randn(*s, dtype=torch.bfloat16) * 3.2)(B, Hkv, Sk, Dh)),
            "v_cache": _w((lambda *s: torch.randn(*s, dtype=torch.bfloat16) * 0.4)(B, Hkv, Sk, Dh)),
            "wq": _w((lambda *s: torch.randn(*s, dtype=torch.bfloat16) * 3.2)(D, Hq * Dh) * (D ** -0.5)),
            "wo": _w((lambda *s: torch.randn(*s, dtype=torch.bfloat16) * 0.4)(Hq * Dh, D) * ((Hq * Dh) ** -0.5)),
        }
    _A_in = _A_setup()

    def _B_setup():
        B, S, D, F = 4, 1, 512, 1792
        return {
            "x": _w((lambda *s: torch.randn(*s, dtype=torch.bfloat16) * 0.05)(B, S, D)),
            "w1": _w((lambda *s: torch.randn(*s, dtype=torch.bfloat16) * 0.05)(D, F)),
            "b1": _w((lambda *s: torch.randn(*s, dtype=torch.bfloat16) * 0.8)(F)),
            "w2": _w((lambda *s: torch.randn(*s, dtype=torch.bfloat16) * 0.05)(F, D)),
            "b2": _w((lambda *s: torch.randn(*s, dtype=torch.bfloat16) * 3.2)(D)),
        }
    _B_in = _B_setup()

    return {
        "A_x": _A_in["x"],
        "A_k_cache": _A_in["k_cache"],
        "A_v_cache": _A_in["v_cache"],
        "A_wq": _A_in["wq"],
        "A_wo": _A_in["wo"],
        "B_x": _B_in["x"],
        "B_w1": _B_in["w1"],
        "B_b1": _B_in["b1"],
        "B_w2": _B_in["w2"],
        "B_b2": _B_in["b2"],
    }

def reference(A_x, A_k_cache, A_v_cache, A_wq, A_wo, B_x, B_w1, B_b1, B_w2, B_b2):
    def _A_ref(x, k_cache, v_cache, wq, wo):
        B, Sq, D = x.shape
        Hq, Dh = 32, 128
        Hkv = k_cache.shape[1]
        rep = Hq // Hkv
        q = (lambda x, *d: x.permute(*d))((x @ wq).reshape(B, Sq, Hq, Dh), 0, 2, 1, 3)
        k = (lambda x, n, axis: torch.repeat_interleave(x, n, dim=axis))(k_cache, rep, axis=1)
        v = (lambda x, n, axis: torch.repeat_interleave(x, n, dim=axis))(v_cache, rep, axis=1)
        scores = torch.einsum("bhqd,bhkd->bhqk", q, k) * (Dh ** -0.5)
        p = _softmax(scores, axis=-1)
        o = torch.einsum("bhqk,bhkd->bhqd", p, v)
        return (lambda x, *d: x.permute(*d))(o, 0, 2, 1, 3).reshape(B, Sq, Hq * Dh) @ wo

    def _B_ref(x, w1, b1, w2, b2):
        h = torch.einsum("bsd,df->bsf", x, w1) + b1
        zero = torch.zeros_like(h)
        r = torch.where(h > zero, h, zero)
        h = r * r
        out = torch.einsum("bsf,fd->bsd", h, w2) + b2
        return out

    x = A_x
    h = x + _A_ref(_layernorm(x, axis=-1), A_k_cache, A_v_cache, A_wq, A_wo)
    h2 = h + _B_ref(_layernorm(h, axis=-1), B_w1, B_b1, B_w2, B_b2)
    return h2
```

```python
import re
TRANS = ('v_exp_', 'v_log_', 'v_rcp_', 'v_rsq_', 'v_sqrt_', 'v_sin_', 'v_cos_')

def regs_of(op):
    op = op.strip()
    if op.startswith('-'): op = op[1:]
    if op.startswith('abs(') and op.endswith(')'): op = op[4:-1]
    if op.startswith('|') and op.endswith('|'): op = op[1:-1]
    m = re.fullmatch(r'([vas])(\d+)', op)
    if m: return {(m.group(1), int(m.group(2)))}
    m = re.fullmatch(r'([vas])\[(\d+):(\d+)\]', op)
    if m: return {(m.group(1), k) for k in range(int(m.group(2)), int(m.group(3)) + 1)}
    if op == 'vcc': return {('s', 'vcc')}
    if op in ('vcc_lo', 'vcc_hi'): return {('s', 'vcc')}
    if op in ('exec', 'exec_lo', 'exec_hi'): return {('s', 'exec')}
    if op == 'm0': return {('s', 'm0')}
    return set()

class Ins:
    def __init__(self, text):
        self.text = text
        t = text.split(';')[0].strip()
        self.label = None; self.mn = None
        if t.endswith(':'):
            self.label = t[:-1]; self.kind = 'label'; return
        if t.startswith('.') or not t:
            self.kind = 'dir'; return
        p = t.split(None, 1)
        self.mn = mn = p[0]
        rest = p[1] if len(p) > 1 else ''
        ops = []; cur = ''; d = 0
        for ch in rest:
            if ch in '[(': d += 1
            if ch in '])': d -= 1
            if ch == ',' and d == 0: ops.append(cur.strip()); cur = ''
            else: cur += ch
        if cur.strip(): ops.append(cur.strip())
        mods = ''
        if ops:
            q = ops[-1].split(None, 1)
            ops[-1] = q[0]
            if len(q) > 1: mods = q[1]
        self.ops = ops; self.mods = mods
        R = [regs_of(o) for o in ops]
        self.w = set(); self.r = set(); self.dpp = False; self.trans = False
        self.srcC = set(); self.srcAB = set(); self.data = set()
        U = lambda l: set().union(*l) if l else set()
        if mn.startswith('v_mfma'):
            self.kind = 'mfma'; self.w = R[0]; self.srcAB = R[1] | R[2]; self.srcC = R[3]; self.r = self.srcAB | self.srcC
            self.passes = 8 if '32x32' in mn else (2 if '4x4x4' in mn else 4)
        elif mn.startswith('v_'):
            self.kind = 'valu'
            self.dpp = ('quad_perm' in mods or 'row_' in mods or 'wave_' in mods)
            self.trans = mn.startswith(TRANS)
            if mn.startswith('v_permlane') and 'swap' in mn:
                self.w = R[0] | R[1]; self.r = R[0] | R[1]
            else:
                self.w = set(R[0]); self.r = U(R[1:])
                if mn.startswith(('v_fmac', 'v_dot2c', 'v_writelane', 'v_pk_fmac')) or self.dpp or 'sdwa' in mn or 'dst_sel' in mods: self.r |= R[0]
                if mn.startswith('v_cndmask') and len(ops) == 3: self.r |= {('s', 'vcc')}
                if mn.startswith('v_cmpx'): self.w |= {('s', 'exec')}
        elif mn.startswith('ds_'):
            self.kind = 'ds'
            if mn.startswith(('ds_read', 'ds_bpermute', 'ds_permute', 'ds_swizzle')): self.w = R[0]; self.r = U(R[1:])
            else: self.r = U(R); self.data = U(R[1:])
        elif mn.startswith(('buffer_', 'global_')):
            self.kind = 'vmem'
            self.lds = ('lds' in mods.split()) or mn.startswith('global_load_lds')
            if mn.startswith('buffer_load'):
                if self.lds: self.r = U(R) | {('s', 'm0')}
                else: self.w = R[0]; self.r = U(R[1:])
            elif mn.startswith('global_load'):
                if self.lds: self.r = U(R) | {('s', 'm0')}
                else: self.w = R[0]; self.r = U(R[1:])
            elif mn.startswith('buffer_store'):
                self.r = U(R); self.data = R[0]
            elif mn.startswith('global_store'):
                self.r = U(R); self.data = R[1]
            else:
                self.r = U(R)
            self.wide = ('x4' in mn or 'x3' in mn) and 'store' in mn
        elif mn.startswith('s_'):
            self.kind = 'salu'
            if mn.startswith(('s_cmp', 's_bitcmp', 's_cbranch', 's_branch', 's_waitcnt', 's_nop', 's_barrier', 's_sleep', 's_endpgm', 's_setprio')):
                self.r = U(R)
            else:
                self.w = set(R[0]) if R else set(); self.r = U(R[1:])
                if 'saveexec' in mn: self.w |= {('s', 'exec')}
        else:
            raise ValueError(text)
    def states(self):
        if self.kind in ('label', 'dir'): return 0
        if self.mn == 's_nop': return int(self.ops[0], 0) + 1
        return 1

def need(p, c):
    n = 0
    if p.kind == 'valu':
        vw = {x for x in p.w if x[0] in 'va'}; sw = {x for x in p.w if x[0] == 's'}
        if c.kind == 'valu':
            if c.mn.startswith(('v_readlane', 'v_readfirstlane')) and vw & c.r: n = max(n, 1)
            if c.dpp and vw & c.r: n = max(n, 2)
            if c.mn.startswith('v_permlane') and vw & c.r: n = max(n, 2)
            if p.trans and not c.trans and vw & c.r: n = max(n, 1)
            if p.trans and c.trans and vw & c.r: n = max(n, 1)
            if sw & c.r: n = max(n, 4 if c.mn.startswith(('v_readlane', 'v_writelane')) else 2)
            if ('s', 'exec') in sw: n = max(n, 5 if c.dpp else 4)
            if ('sdwa' in p.mn or 'op_sel' in p.mods or 'dst_sel' in p.mods) and vw & (c.r | c.w): n = max(n, 1)
        if c.kind == 'mfma':
            if vw & c.r: n = max(n, 2)
            if ('s', 'exec') in sw: n = max(n, 4)
        if c.kind == 'vmem' and sw & c.r: n = max(n, 5)
        if c.kind == 'salu' and sw & c.r: n = max(n, 1)
        if c.kind in ('ds', 'vmem') and p.trans and vw & c.r: n = max(n, 1)
    if p.kind == 'mfma':
        P = p.passes
        t_other = {2: 5, 4: 8, 8: 12}[P]; t_c = {2: 4, 4: 6, 8: 10}[P]
        if c.kind == 'mfma':
            if p.w & c.srcAB: n = max(n, t_other)
            if p.w & c.srcC and not (p.w == c.srcC and c.passes == P and P >= 4): n = max(n, t_c)
            if p.w & c.w and not (p.w & c.srcC): n = max(n, t_other)
        if c.kind == 'valu':
            if p.w & (c.r | c.w): n = max(n, t_other)
            if p.srcC & c.w: n = max(n, {2: 1, 4: 3, 8: 7}[P])
        if c.kind in ('ds', 'vmem') and p.w & (c.r | c.w): n = max(n, t_other)
    if p.kind == 'salu':
        if ('s', 'm0') in p.w and c.kind == 'vmem' and getattr(c, 'lds', False): n = max(n, 1)
    if p.kind == 'vmem' and getattr(p, 'wide', False):
        if c.kind == 'valu' and p.data & c.w: n = max(n, 2)
        elif p.data & c.w: n = max(n, 1)
    return n

class Asm:
    def __init__(self):
        self.L = []
        self.vm = []
        self.done = -1
        self.uid = 0
    def __call__(self, text, tag=None):
        for line in text.split('\n'):
            line = line.strip()
            if not line: continue
            ins = Ins(line)
            self.L.append(ins)
            if ins.kind == 'vmem':
                self.vm.append(tag if tag is not None else f'_{len(self.vm)}')
    def label(self, name): self(name + ':')
    def new(self, p='L'):
        self.uid += 1; return f'{p}_{self.uid}'
    def idx(self, tag):
        ids = [k for k, t in enumerate(self.vm) if t == tag]
        assert ids, tag
        return ids[-1]
    def wait_idx(self, k):
        if k <= self.done: return
        n = len(self.vm) - 1 - k
        assert n <= 63, n
        self(f's_waitcnt vmcnt({n})')
        self.done = k
    def wait_vm(self, tag): self.wait_idx(self.idx(tag))
    def wait_all(self): self.wait_idx(len(self.vm) - 1) if self.vm else None
    def save(self): return (list(self.vm), self.done)
    def restore(self, st): self.vm = list(st[0]); self.done = st[1]
    def finish(self):
        out = []
        W = 24
        for ins in self.L:
            if ins.kind not in ('label', 'dir'):
                dist = 0; pad = 0
                for p in reversed(out):
                    if p.kind in ('label', 'dir'): continue
                    if p.mn in ('s_branch', 's_endpgm', 's_setpc_b64'): break
                    nd = need(p, ins)
                    if nd > dist: pad = max(pad, nd - dist)
                    dist += p.states()
                    if dist >= W: break
                while pad > 0:
                    k = min(pad, 16); out.append(Ins(f's_nop {k-1}')); pad -= k
            out.append(ins)
        lab = {x.label: k for k, x in enumerate(out) if x.kind == 'label'}
        for k, x in enumerate(out):
            if x.kind == 'salu' and (x.mn.startswith('s_cbranch') or x.mn == 's_branch'):
                tgt = lab[x.ops[0]]
                pre = []
                for p in reversed(out[:k + 1]):
                    if p.kind in ('label', 'dir'): continue
                    pre.append(p)
                    if len(pre) > W: break
                d0 = 0
                for c in out[tgt:tgt + 2 * W]:
                    if c.kind in ('label', 'dir'): continue
                    dist = d0
                    for p in pre:
                        nd = need(p, c)
                        if nd > dist: raise RuntimeError(f'hazard across branch {x.text}: {p.text} -> {c.text} need {nd} have {dist}')
                        dist += p.states()
                    d0 += c.states()
                    if c.mn in ('s_branch', 's_endpgm') or d0 > W: break
        return '\n'.join(('' if i.kind == 'label' else '    ') + i.text for i in out)
```

```python
import sys
from asmlib import Asm
KN = 'sequential_preLN__gqa_block_cached__dense_activation_squared_relu__decode'

EPOCH = 0x0
QBUF  = 0x1000
MLBUF = 0x20000
OBUF  = 0x40000
YBUF  = 0x80000
PBUF  = 0x90000
STAMP = 0x200000
OOB   = 0x20000000
NC = 28
RING = 9
RINGB = RING * 4096
MISC = 4 * RINGB
XN = MISC
XNS = 1088
RED = MISC + 4608
QS = RED + 8192
LDS_TOTAL = 163840
QS = RED + 1024
ZERO = RED + 8192
assert ZERO + 64 <= LDS_TOTAL
LOG2E = '0x3fb8aa3b'
SCALE = '0x3db504f3'
LIMIT = 1 << 16

def v(i, n=1): return f'v{i}' if n == 1 else f'v[{i}:{i+n-1}]'
def ac(i, n=1): return f'a{i}' if n == 1 else f'a[{i}:{i+n-1}]'
def s(i, n=1): return f's{i}' if n == 1 else f's[{i}:{i+n-1}]'

sWAVE = 3
rK, rV, rWS, rX, rA, rB, rC = 32, 36, 40, 44, 48, 52, 56
sKV, sRING, sG, sI, sB, sSPLIT, sT0, sT1, sT2, sT3, sT4 = 60, 61, 62, 63, 64, 65, 66, 67, 68, 69, 70
sQM = 72
sTL, sTH, sSAME, sCNT, sPIV, sJ = 80, 81, 83, 84, 85, 86
sST = 87
vLANE, vL16 = 1, 2
vT = 3
vKO, vVO, vKR, vM0, vM1 = 8, 12, 13, 17, 18
vS4, vN4 = 19, 20
vO = 24
vQ = 32
vKF = 96
vS = 128
vP = 144
vA = 160
vPOLL = 168
vQF = 176
vLN = 192

def allreduce(a, op, regs, steps, tmp):
    for st in steps:
        if st in ('p16', 'p32'):
            for k, r in enumerate(regs): a(f'v_mov_b32 {v(tmp+k)}, {v(r)}')
            for k, r in enumerate(regs): a(f'v_permlane{st[1:]}_swap_b32 {v(r)}, {v(tmp+k)}')
            for k, r in enumerate(regs): a(f'{op} {v(r)}, {v(r)}, {v(tmp+k)}')
        else:
            for r in regs: a(f'{op}_dpp {v(r)}, {v(r)}, {v(r)} {st} row_mask:0xf bank_mask:0xf')
ROW = ['row_ror:8', 'row_ror:4', 'row_ror:2', 'row_ror:1', 'p16', 'p32']
QUAD = ['quad_perm:[1,0,3,2]', 'quad_perm:[2,3,0,1]', 'p16', 'p32']

def unpack(a, dst, src):
    a(f'v_lshlrev_b32 {v(dst)}, 16, {v(src)}')
    a(f'v_and_b32 {v(dst+1)}, 0xffff0000, {v(src)}')

def layernorm(a, f, out, t):
    a(f'v_readfirstlane_b32 {s(sPIV)}, {v(f)}')
    for k in range(8): a(f'v_subrev_f32 {v(t+k)}, {s(sPIV)}, {v(f+k)}')
    A, B, A2, B2 = t+8, t+9, t+10, t+11
    a(f'v_add_f32 {v(A)}, {v(t)}, {v(t+1)}'); a(f'v_mul_f32 {v(B)}, {v(t)}, {v(t)}')
    a(f'v_add_f32 {v(A2)}, {v(t+2)}, {v(t+3)}'); a(f'v_mul_f32 {v(B2)}, {v(t+1)}, {v(t+1)}')
    a(f'v_add_f32 {v(A)}, {v(A)}, {v(t+4)}'); a(f'v_fmac_f32 {v(B)}, {v(t+2)}, {v(t+2)}')
    a(f'v_add_f32 {v(A2)}, {v(A2)}, {v(t+5)}'); a(f'v_fmac_f32 {v(B2)}, {v(t+3)}, {v(t+3)}')
    a(f'v_add_f32 {v(A)}, {v(A)}, {v(t+6)}'); a(f'v_fmac_f32 {v(B)}, {v(t+4)}, {v(t+4)}')
    a(f'v_add_f32 {v(A2)}, {v(A2)}, {v(t+7)}'); a(f'v_fmac_f32 {v(B2)}, {v(t+5)}, {v(t+5)}')
    a(f'v_fmac_f32 {v(B)}, {v(t+6)}, {v(t+6)}'); a(f'v_fmac_f32 {v(B2)}, {v(t+7)}, {v(t+7)}')
    a(f'v_add_f32 {v(A)}, {v(A)}, {v(A2)}'); a(f'v_add_f32 {v(B)}, {v(B)}, {v(B2)}')
    allreduce(a, 'v_add_f32', [A, B], ROW, t+12)
    a(f'v_mul_f32 {v(A)}, 0x3b000000, {v(A)}')
    a(f'v_mul_f32 {v(B)}, 0x3b000000, {v(B)}')
    a(f'v_add_f32 {v(A2)}, {s(sPIV)}, {v(A)}')
    a(f'v_fma_f32 {v(B)}, -{v(A)}, {v(A)}, {v(B)}')
    a(f'v_max_f32 {v(B)}, 0, {v(B)}')
    a(f'v_cvt_pk_bf16_f32 {v(A)}, {v(A2)}, {v(B)}')
    a(f'v_and_b32 {v(B)}, 0xffff0000, {v(A)}')
    a(f'v_lshlrev_b32 {v(A)}, 16, {v(A)}')
    a(f'v_add_f32 {v(B)}, 0x3727c5ac, {v(B)}')
    for k in range(4): a(f'v_sub_f32 {v(t+k)}, {v(f+k)}, {v(A)}')
    a(f'v_cvt_pk_bf16_f32 {v(B)}, {v(B)}, {v(B)}')
    a(f'v_and_b32 {v(B)}, 0xffff0000, {v(B)}')
    a(f'v_sqrt_f32 {v(B)}, {v(B)}')
    for k in range(4, 8): a(f'v_sub_f32 {v(t+k)}, {v(f+k)}, {v(A)}')
    a(f'v_cvt_pk_bf16_f32 {v(B)}, {v(B)}, {v(B)}')
    a(f'v_and_b32 {v(B)}, 0xffff0000, {v(B)}')
    a(f'v_rcp_f32 {v(B)}, {v(B)}')
    for k in range(4): a(f'v_cvt_pk_bf16_f32 {v(out+k)}, {v(t+2*k)}, {v(t+2*k+1)}')
    for k in range(4): unpack(a, t+2*k, out+k)
    for k in range(8): a(f'v_mul_f32 {v(t+k)}, {v(t+k)}, {v(B)}')
    for k in range(4): a(f'v_cvt_pk_bf16_f32 {v(out+k)}, {v(t+2*k)}, {v(t+2*k+1)}')

def srd(a, r, ptr, size):
    a(f's_mov_b32 {s(r)}, {s(ptr)}'); a(f's_mov_b32 {s(r+1)}, {s(ptr+1)}')
    a(f's_mov_b32 {s(r+2)}, {hex(size)}'); a(f's_mov_b32 {s(r+3)}, 0x20000')

def gen(D=8, n0=3, v0=4, pq=None, pm=None, stamps=False, fast=True, late_w=False, order_y=(0, 2, 4, 6, 1, 3, 5, 7)):
    a = Asm()
    nst = [0]
    def stamp(k):
        if stamps:
            a(f's_memrealtime {s(sT3, 2) if False else s(sST + 2*0, 2)}') if False else None
    stamp_regs = {}
    def st(name):
        if not stamps: return
        a('s_waitcnt lgkmcnt(0)')
        a('s_memrealtime s[100:101]')
        a('s_waitcnt lgkmcnt(0)')
        if name not in stamp_regs: stamp_regs[name] = sST + len(stamp_regs)
        assert stamp_regs[name] < 100
        a(f's_mov_b32 {s(stamp_regs[name])}, s100')

    cold = []
    a('s_cmp_ge_u32 s2, 256')
    a('s_cbranch_scc1 L_END')
    a('s_load_dwordx16 s[4:19], s[0:1], 0')
    a('s_load_dwordx2 s[28:29], s[0:1], 96')
    a('s_load_dwordx8 s[20:27], s[0:1], 64')
    if stamps:
        for k in range(sST, 100): a(f's_mov_b32 {s(k)}, 0')
    a(f'v_lshrrev_b32 {v(vT)}, 6, v0')
    a(f'v_and_b32 {v(vLANE)}, 63, v0')
    a(f'v_readfirstlane_b32 {s(sWAVE)}, {v(vT)}')
    a(f's_and_b32 {s(sG)}, s2, 7'); a(f's_lshr_b32 {s(sI)}, s2, 3')
    a(f's_and_b32 {s(sB)}, {s(sI)}, 3'); a(f's_lshr_b32 {s(sSPLIT)}, {s(sI)}, 2')
    a(f'v_lshrrev_b32 {v(vS4)}, 4, {v(vLANE)}'); a(f'v_and_b32 {v(vN4)}, 15, {v(vLANE)}')
    a(f'v_lshlrev_b32 {v(vL16)}, 4, {v(vLANE)}')
    a(f's_lshl_b32 {s(sKV)}, {s(sB)}, 3'); a(f's_add_u32 {s(sKV)}, {s(sKV)}, {s(sG)}'); a(f's_lshl_b32 {s(sKV)}, {s(sKV)}, 3')
    a(f's_add_u32 {s(sKV)}, {s(sKV)}, {s(sSPLIT)}'); a(f's_lshl_b32 {s(sKV)}, {s(sKV)}, 18')
    a(f's_lshl_b32 {s(sT0)}, {s(sWAVE)}, 12'); a(f's_add_u32 {s(sKV)}, {s(sKV)}, {s(sT0)}')
    a(f's_mul_i32 {s(sRING)}, {s(sWAVE)}, {RINGB}')
    a(f'v_lshlrev_b32 {v(vT)}, 4, v0')
    a(f'v_lshrrev_b32 {v(vT+1)}, 1, {v(vLANE)}'); a(f'v_lshlrev_b32 {v(vT+1)}, 13, {v(vT+1)}')
    a(f'v_and_b32 {v(vT+2)}, 1, {v(vLANE)}'); a(f'v_lshl_add_u32 {v(vT+1)}, {v(vT+2)}, 4, {v(vT+1)}')
    for j in range(4):
        a(f'v_add_u32 {v(vT+2)}, {4*j}, {v(vS4)}'); a(f'v_xor_b32 {v(vT+2)}, {v(vT+2)}, {v(vN4)}')
        a(f'v_lshlrev_b32 {v(vT+2)}, 4, {v(vT+2)}'); a(f'v_lshl_add_u32 {v(vKO+j)}, {v(vS4)}, 8, {v(vT+2)}')
    a(f's_lshl_b32 {s(sT1)}, {s(sWAVE)}, 20'); a(f's_lshl_b32 {s(sT2)}, {s(sG)}, 10'); a(f's_add_u32 {s(sT1)}, {s(sT1)}, {s(sT2)}')
    a(f's_lshl_b32 {s(sT2)}, {s(sI)}, 5'); a(f's_add_u32 {s(sT1)}, {s(sT1)}, {s(sT2)}')
    a(f's_add_u32 m0, {s(sRING)}, {8*4096}')
    a('s_waitcnt lgkmcnt(0)')
    st('start')
    srd(a, rX, 4, 4096)
    a(f'buffer_load_dwordx4 {v(vLN+16, 4)}, {v(vT)}, {s(rX,4)}, 0 offen', tag='x')
    srd(a, rA, 10, 512*4096*2)
    a(f's_load_dwordx2 s[30:31], s[28:29], {EPOCH}')
    for q in range(4):
        a(f'buffer_load_dwordx4 {v(vT+1)}, {s(rA,4)}, {s(sT1)} offen lds', tag='wq')
        if q < 3:
            a(f's_add_u32 {s(sT1)}, {s(sT1)}, {32*8192}'); a('s_add_u32 m0, m0, 1024')
    srd(a, rK, 6, 1 << 26)
    srd(a, rWS, 28, 1 << 28)

    stream = []
    def pace():
        if len(stream) >= D: a.wait_idx(stream[len(stream) - D])
    def loadK(t, paced=True, hook=None):
        a(f's_add_u32 {s(sT0)}, {s(sKV)}, {t*16384}')
        a(f's_add_u32 m0, {s(sRING)}, {(t % RING)*4096}')
        for j in range(4):
            if paced: pace()
            a(f'buffer_load_dwordx4 {v(vKO+j)}, {s(rK,4)}, {s(sT0)} offen offset:{j*1024} nt lds', tag=f'K{t}')
            stream.append(len(a.vm) - 1)
            if hook: hook()
    def loadV(t, hook=None):
        for j in range(4):
            pace()
            if j == 0 or hook: a(f's_add_u32 {s(sT0)}, {s(sKV)}, {t*16384}')
            a(f'buffer_load_dwordx4 {ac(16*t+4*j, 4)}, {v(vVO)}, {s(rV,4)}, {s(sT0)} offen offset:{j*256} nt', tag=f'V{t}')
            stream.append(len(a.vm) - 1)
            if hook: hook()

    loadK(0, paced=False)
    for k in range(4): a(f'v_mov_b32 {v(vPOLL+k)}, -1')
    a(f's_lshl_b32 {s(sT1)}, {s(sG)}, 15'); a(f's_lshl_b32 {s(sT2)}, {s(sI)}, 10'); a(f's_add_u32 {s(sT1)}, {s(sT1)}, {s(sT2)}')
    a(f's_lshl_b32 {s(sT2)}, {s(sWAVE)}, 8'); a(f's_add_u32 {s(sT1)}, {s(sT1)}, {s(sT2)}'); a(f's_add_u32 {s(sT1)}, {s(sT1)}, {OBUF}')
    a(f's_lshl_b32 {s(sT2)}, {s(sG)}, 13'); a(f's_lshl_b32 {s(sT3)}, {s(sWAVE)}, 11'); a(f's_add_u32 {s(sT2)}, {s(sT2)}, {s(sT3)}')
    a(f's_lshl_b32 {s(sT3)}, {s(sI)}, 7'); a(f's_add_u32 {s(sT2)}, {s(sT2)}, {s(sT3)}'); a(f's_add_u32 {s(sT2)}, {s(sT2)}, {YBUF - 256}')
    a(f's_cmp_lt_u32 {s(sI)}, 16'); a(f's_cselect_b32 {s(sT2)}, {s(sT2)}, {OOB}')
    a(f'v_mov_b32 {v(vT+2)}, {OOB}'); a(f'v_mov_b32 {v(vT+3)}, {s(sT2)}'); a(f'v_mov_b32 {v(vT+4)}, {s(sT1)}')
    a(f'v_cmp_gt_u32 vcc, 24, {v(vLANE)}'); a(f'v_cndmask_b32 {v(vT+2)}, {v(vT+2)}, {v(vT+3)}, vcc')
    a(f'v_cmp_gt_u32 vcc, 16, {v(vLANE)}'); a(f'v_cndmask_b32 {v(vT+2)}, {v(vT+2)}, {v(vT+4)}, vcc')
    a(f'v_add_u32 {v(vT+2)}, {v(vT+2)}, {v(vL16)}')
    a(f'buffer_store_dwordx4 {v(vPOLL,4)}, {v(vT+2)}, {s(rWS,4)}, 0 offen sc1', tag='rst')
    a(f's_sub_u32 {s(sJ)}, s2, 128')
    a(f's_lshl_b32 {s(sT1)}, {s(sJ)}, 13'); a(f's_lshl_b32 {s(sT2)}, {s(sWAVE)}, 11'); a(f's_add_u32 {s(sT1)}, {s(sT1)}, {s(sT2)}'); a(f's_add_u32 {s(sT1)}, {s(sT1)}, {PBUF}')
    a(f's_cmp_lt_u32 {s(sJ)}, {NC}'); a(f's_cselect_b32 {s(sT1)}, {s(sT1)}, {OOB}')
    a(f'buffer_store_dwordx4 {v(vPOLL,4)}, {v(vL16)}, {s(rWS,4)}, {s(sT1)} offen sc1', tag='rst')
    a(f'buffer_store_dwordx4 {v(vPOLL,4)}, {v(vL16)}, {s(rWS,4)}, {s(sT1)} offen offset:1024 sc1', tag='rst')
    for t in range(1, n0): loadK(t, paced=False)
    srd(a, rV, 8, 1 << 26)
    a(f'v_lshlrev_b32 {v(vVO)}, 10, {v(vS4)}'); a(f'v_lshl_add_u32 {v(vVO)}, {v(vN4)}, 4, {v(vVO)}')
    for j in range(4):
        a(f'v_xor_b32 {v(vT+2)}, {v(vS4)}, {v(vN4)}')
        if j: a(f'v_xor_b32 {v(vT+2)}, {4*j}, {v(vT+2)}')
        a(f'v_lshlrev_b32 {v(vT+2)}, 4, {v(vT+2)}'); a(f'v_lshl_add_u32 {v(vT+2)}, {v(vN4)}, 8, {v(vT+2)}')
        a(f'v_add_u32 {v(vKR+j)}, {s(sRING)}, {v(vT+2)}')
    for k in range(4):
        m = 0x11111111 << k
        a(f's_mov_b32 {s(sQM+2*k)}, {hex(m)}'); a(f's_mov_b32 {s(sQM+2*k+1)}, {hex(m)}')
    a(f'v_mov_b32 {v(vT+2)}, 0xffff'); a(f'v_mov_b32 {v(vT+3)}, 0xffff0000')
    a(f'v_cndmask_b32 {v(vM0)}, 0, {v(vT+2)}, {s(sQM,2)}'); a(f'v_cndmask_b32 {v(vM0)}, {v(vM0)}, {v(vT+3)}, {s(sQM+2,2)}')
    a(f'v_cndmask_b32 {v(vM1)}, 0, {v(vT+2)}, {s(sQM+4,2)}'); a(f'v_cndmask_b32 {v(vM1)}, {v(vM1)}, {v(vT+3)}, {s(sQM+6,2)}')
    vXW, vWA, vXA, vRW, vRR = vQF, vQF+1, vQF+2, vQF+3, vQF+4
    a(f's_mul_i32 {s(sT1)}, {s(sWAVE)}, {XNS}'); a(f's_add_u32 {s(sT1)}, {s(sT1)}, {XN}')
    a(f'v_add_u32 {v(vXW)}, {s(sT1)}, {v(vL16)}')
    a(f'v_lshlrev_b32 {v(vWA)}, 8, {v(vS4)}'); a(f'v_lshl_add_u32 {v(vWA)}, {v(vN4)}, 3, {v(vWA)}'); a(f'v_add_u32 {v(vWA)}, {s(sRING)}, {v(vWA)}')
    a(f'v_and_b32 {v(vT+2)}, 3, {v(vLANE)}')
    a(f'v_mul_u32_u24 {v(vXA)}, {XNS}, {v(vT+2)}'); a(f'v_lshl_add_u32 {v(vXA)}, {v(vS4)}, 4, {v(vXA)}')
    a(f's_lshl_b32 {s(sT1)}, {s(sWAVE)}, 8'); a(f's_add_u32 {s(sT2)}, {s(sT1)}, {XN}'); a(f'v_add_u32 {v(vXA)}, {s(sT2)}, {v(vXA)}')
    a(f'v_lshlrev_b32 {v(vRW)}, 6, {v(vT+2)}'); a(f'v_lshl_add_u32 {v(vRW)}, {v(vS4)}, 4, {v(vRW)}')
    a(f's_add_u32 {s(sT2)}, {s(sT1)}, {RED}'); a(f'v_add_u32 {v(vRW)}, {s(sT2)}, {v(vRW)}')
    a(f's_lshl_b32 {s(sT1)}, {s(sWAVE)}, 6'); a(f's_add_u32 {s(sT1)}, {s(sT1)}, {RED}'); a(f'v_add_u32 {v(vRR)}, {s(sT1)}, {v(vL16)}')
    a('s_waitcnt lgkmcnt(0)')
    a(f's_getreg_b32 {s(sT1)}, hwreg(HW_REG_XCC_ID)'); a(f's_and_b32 {s(sT1)}, {s(sT1)}, 15')
    a('s_add_u32 s30, s30, 1'); a('s_addc_u32 s31, s31, 0')
    a(f's_mov_b32 {s(sTL)}, s30'); a(f's_and_b32 {s(sTH)}, s31, 0xfffffff0'); a(f's_or_b32 {s(sTH)}, {s(sTH)}, {s(sT1)}')
    a.wait_vm('x')
    st('x')
    for k in range(4): unpack(a, vLN+20+2*k, vLN+16+k)
    layernorm(a, vLN+20, vLN+16, vLN)
    a(f'ds_write_b128 {v(vXW)}, {v(vLN+16,4)}')
    a.wait_vm('rst')
    for k in range(4):
        a(f'ds_read_b64_tr_b16 {v(vKF+4*k,2)}, {v(vWA)} offset:{8*4096 + k*1024}')
        a(f'ds_read_b64_tr_b16 {v(vKF+4*k+2,2)}, {v(vWA)} offset:{8*4096 + k*1024 + 128}')
    a('s_waitcnt lgkmcnt(0)')
    a('s_barrier')
    for k in range(4): a(f'ds_read_b128 {v(vKF+16+4*k,4)}, {v(vXA)} offset:{k*64}')
    for k in range(4):
        a(f's_waitcnt lgkmcnt({3-k})')
        a(f'v_mfma_f32_16x16x32_bf16 {v(vO,4)}, {v(vKF+4*k,4)}, {v(vKF+16+4*k,4)}, {"0" if k == 0 else v(vO,4)}')
    a('s_mov_b32 exec_lo, 0x000f000f'); a('s_mov_b32 exec_hi, 0x000f000f')
    a(f'ds_write_b128 {v(vRW)}, {v(vO,4)}')
    a('s_mov_b64 exec, -1')
    a('s_waitcnt lgkmcnt(0)')
    a('s_barrier')
    for k in range(4): a(f'ds_read_b128 {v(vKF+4*k,4)}, {v(vRR)} offset:{k*256}')
    a(f's_lshl_b32 {s(sT1)}, {s(sG)}, 2'); a(f's_add_u32 {s(sT1)}, {s(sT1)}, {s(sWAVE)}'); a(f's_lshl_b32 {s(sT1)}, {s(sT1)}, 11')
    a(f's_lshl_b32 {s(sT2)}, {s(sI)}, 6'); a(f's_add_u32 {s(sT1)}, {s(sT1)}, {s(sT2)}'); a(f's_add_u32 {s(sT1)}, {s(sT1)}, {QBUF}')
    a(f'v_mov_b32 {v(vPOLL+2)}, {s(sTL)}'); a(f'v_mov_b32 {v(vPOLL+3)}, {s(sTH)}')
    a('s_waitcnt lgkmcnt(2)')
    for k in range(4): a(f'v_add_f32 {v(vKF+k)}, {v(vKF+k)}, {v(vKF+4+k)}')
    a('s_waitcnt lgkmcnt(0)')
    for k in range(4): a(f'v_add_f32 {v(vKF+8+k)}, {v(vKF+8+k)}, {v(vKF+12+k)}')
    for k in range(4): a(f'v_add_f32 {v(vKF+k)}, {v(vKF+k)}, {v(vKF+8+k)}')
    a(f'v_cvt_pk_bf16_f32 {v(vPOLL)}, {v(vKF)}, {v(vKF+1)}'); a(f'v_cvt_pk_bf16_f32 {v(vPOLL+1)}, {v(vKF+2)}, {v(vKF+3)}')
    a('s_mov_b64 exec, 15')
    a(f'buffer_store_dwordx4 {v(vPOLL,4)}, {v(vL16)}, {s(rWS,4)}, {s(sT1)} offen sc1', tag='qpub')
    a('s_mov_b64 exec, -1')
    st('qpub')

    def tag_poll_issue(base, sreg, tag):
        a(f's_lshl_b32 {s(sreg)}, {s(sG)}, 2'); a(f's_add_u32 {s(sreg)}, {s(sreg)}, {s(sB)}'); a(f's_lshl_b32 {s(sreg)}, {s(sreg)}, 11'); a(f's_add_u32 {s(sreg)}, {s(sreg)}, {base}')
        a(f'buffer_load_dwordx4 {v(vPOLL,4)}, {v(vL16)}, {s(rWS,4)}, {s(sreg)} offen sc1', tag=tag)
        a(f'buffer_load_dwordx4 {v(vPOLL+4,4)}, {v(vL16)}, {s(rWS,4)}, {s(sreg)} offen offset:1024 sc1', tag=tag)
    def tag_poll_check(sreg, tag):
        a.wait_vm(tag)
        a(f's_mov_b32 {s(sCNT)}, 0')
        chk, ok, retry = a.new('CHK'), a.new('OK'), a.new('RETRY')
        a.label(chk)
        a(f'v_xor_b32 {v(vT)}, {s(sTL)}, {v(vPOLL+2)}'); a(f'v_xor_b32 {v(vT+1)}, {s(sTL)}, {v(vPOLL+6)}')
        a(f'v_xor_b32 {v(vT+2)}, {s(sTH)}, {v(vPOLL+3)}'); a(f'v_xor_b32 {v(vT+3)}, {s(sTH)}, {v(vPOLL+7)}')
        a(f'v_or_b32 {v(vT+2)}, {v(vT+2)}, {v(vT+3)}')
        a(f'v_and_b32 {v(vT+3)}, 0xfffffff0, {v(vT+2)}')
        a(f'v_or3_b32 {v(vT)}, {v(vT)}, {v(vT+1)}, {v(vT+3)}')
        a(f'v_cmp_ne_u32 vcc, 0, {v(vT)}')
        a(f's_cbranch_vccnz {retry}')
        a.label(ok)
        def blk():
            stt = a.save()
            a.label(retry)
            a(f's_add_u32 {s(sCNT)}, {s(sCNT)}, 1'); a(f's_cmp_ge_u32 {s(sCNT)}, {LIMIT}'); a(f's_cbranch_scc1 {ok}')
            a(f'buffer_load_dwordx4 {v(vPOLL,4)}, {v(vL16)}, {s(rWS,4)}, {s(sreg)} offen sc1')
            a(f'buffer_load_dwordx4 {v(vPOLL+4,4)}, {v(vL16)}, {s(rWS,4)}, {s(sreg)} offen offset:1024 sc1')
            a('s_waitcnt vmcnt(0)'); a(f's_branch {chk}')
            a.restore(stt)
        cold.append(blk)

    nK1 = 4 * RING + 4 * v0
    if pq is None: pq = nK1 - D - 2
    def hook_q():
        if len(stream) == pq: tag_poll_issue(QBUF, sT4, 'qpoll')
    for t in range(n0, RING): loadK(t, hook=hook_q)
    for t in range(v0): loadV(t, hook=hook_q)
    tag_poll_check(sT4, 'qpoll')
    st('qok')
    a(f'v_cmp_ne_u32 vcc, 0, {v(vT+2)}')
    a(f's_cmp_eq_u64 vcc, 0'); a(f's_cselect_b32 {s(sSAME)}, 1, 0')
    a(f's_lshl_b32 {s(sT1)}, {s(sWAVE)}, 10'); a(f's_add_u32 {s(sT1)}, {s(sT1)}, {QS}')
    a(f'v_lshl_add_u32 {v(vT)}, {v(vLANE)}, 3, {s(sT1)}')
    a(f'ds_write_b64 {v(vT)}, {v(vPOLL,2)}'); a(f'ds_write_b64 {v(vT)}, {v(vPOLL+4,2)} offset:512')
    a(f'v_lshrrev_b32 {v(vT+1)}, 2, {v(vN4)}'); a(f'v_lshlrev_b32 {v(vT+1)}, 8, {v(vT+1)}'); a(f'v_lshl_add_u32 {v(vT+1)}, {v(vS4)}, 4, {v(vT+1)}')
    a(f'v_add_u32 {v(vT+1)}, {s(sT1)}, {v(vT+1)}')
    a('s_waitcnt lgkmcnt(0)')
    for j in range(4): a(f'ds_read_b128 {v(vQF+4*j,4)}, {v(vT+1)} offset:{j*64}')
    def qk_read(t):
        a.wait_vm(f'K{t}')
        for j in range(4): a(f'ds_read_b128 {v(vKF+16*(t&1)+4*j,4)}, {v(vKR+j)} offset:{(t % RING)*4096}')
    def qk_mma(t, pending):
        T, tau = t >> 2, t & 3
        for j in range(4):
            a(f's_waitcnt lgkmcnt({3-j+pending})')
            c = '0' if (tau == 0 and j == 0) else v(vS+4*T, 4)
            a(f'v_mfma_f32_16x16x32_bf16 {v(vS+4*T,4)}, {v(vKF+16*(t&1)+4*j,4)}, {v(vQ+16*tau+4*j,4)}, {c}')
    def s_round(T):
        b = vS + 4*T
        for rnd in range(2):
            a(f'v_cvt_pk_bf16_f32 {v(vT)}, {v(b)}, {v(b+1)}'); a(f'v_cvt_pk_bf16_f32 {v(vT+1)}, {v(b+2)}, {v(b+3)}')
            unpack(a, b, vT); unpack(a, b+2, vT+1)
            if rnd == 0:
                for k in range(4): a(f'v_mul_f32 {v(b+k)}, {SCALE}, {v(b+k)}')
    qk_read(0)
    a('s_waitcnt lgkmcnt(4)')
    for tau in range(4):
        for k in range(16): a(f'v_cndmask_b32 {v(vQ+16*tau+k)}, 0, {v(vQF+k)}, {s(sQM+2*tau,2)}')
    for t in range(RING):
        if t + 1 < RING: qk_read(t + 1); qk_mma(t, 4)
        else: qk_mma(t, 0)
        if t & 3 == 3: s_round(t >> 2)
        if RING + t < 16: loadK(RING + t)
    todoK = list(range(RING, 16))
    state = dict(stats=False, mlchk=False, pv=0)
    nTot = 128
    if pm is None: pm = 104
    def stats():
        mx = vLN; t = vLN + 1
        a(f'v_max3_f32 {v(mx)}, {v(vS)}, {v(vS+1)}, {v(vS+2)}')
        for k in range(3, 15, 2): a(f'v_max3_f32 {v(mx)}, {v(mx)}, {v(vS+k)}, {v(vS+k+1)}')
        a(f'v_max_f32 {v(mx)}, {v(mx)}, {v(vS+15)}')
        allreduce(a, 'v_max_f32', [mx], QUAD, t)
        for k in range(16): a(f'v_sub_f32 {v(vP+k)}, {v(vS+k)}, {v(mx)}')
        for k in range(16): a(f'v_mul_f32 {v(vP+k)}, {LOG2E}, {v(vP+k)}')
        for k in range(16): a(f'v_exp_f32 {v(vP+k)}, {v(vP+k)}')
        for k in range(8): a(f'v_add_f32 {v(vP+k)}, {v(vP+k)}, {v(vP+8+k)}')
        for k in range(4): a(f'v_add_f32 {v(vP+k)}, {v(vP+k)}, {v(vP+4+k)}')
        for k in range(2): a(f'v_add_f32 {v(vP+k)}, {v(vP+k)}, {v(vP+2+k)}')
        a(f'v_add_f32 {v(mx+1)}, {v(vP)}, {v(vP+1)}')
        allreduce(a, 'v_add_f32', [mx+1], QUAD, vLN+4)
        a(f'v_mov_b32 {v(mx+2)}, {s(sTL)}'); a(f'v_mov_b32 {v(mx+3)}, {s(sTH)}')
        a(f's_lshl_b32 {s(sT1)}, {s(sG)}, 2'); a(f's_add_u32 {s(sT1)}, {s(sT1)}, {s(sB)}'); a(f's_lshl_b32 {s(sT1)}, {s(sT1)}, 11')
        a(f's_lshl_b32 {s(sT2)}, {s(sSPLIT)}, 8'); a(f's_add_u32 {s(sT1)}, {s(sT1)}, {s(sT2)}')
        a(f's_lshl_b32 {s(sT2)}, {s(sWAVE)}, 4'); a(f's_add_u32 {s(sT1)}, {s(sT1)}, {s(sT2)}'); a(f's_add_u32 {s(sT1)}, {s(sT1)}, {MLBUF}')
        a('s_mov_b64 exec, 0x1111')
        a(f'buffer_store_dwordx4 {v(mx,4)}, {v(vL16)}, {s(rWS,4)}, {s(sT1)} offen sc1', tag='mlpub')
        a('s_mov_b64 exec, -1')
        st('mlpub')
    def make_p():
        tag_poll_check(sT4, 'mlpoll')
        st('mlok')
        M, L_, t = vLN, vLN+1, vLN+2
        a(f'v_max_f32 {v(M)}, {v(vPOLL)}, {v(vPOLL+4)}')
        allreduce(a, 'v_max_f32', [M], QUAD, vLN+4)
        a(f'v_sub_f32 {v(t)}, {v(vPOLL)}, {v(M)}'); a(f'v_sub_f32 {v(t+1)}, {v(vPOLL+4)}, {v(M)}')
        a(f'v_mul_f32 {v(t)}, {LOG2E}, {v(t)}'); a(f'v_mul_f32 {v(t+1)}, {LOG2E}, {v(t+1)}')
        a(f'v_exp_f32 {v(t)}, {v(t)}'); a(f'v_exp_f32 {v(t+1)}, {v(t+1)}')
        for k in range(16): a(f'v_sub_f32 {v(vP+k)}, {v(vS+k)}, {v(M)}')
        a(f'v_mul_f32 {v(L_)}, {v(t)}, {v(vPOLL+1)}'); a(f'v_fmac_f32 {v(L_)}, {v(t+1)}, {v(vPOLL+5)}')
        for k in range(16): a(f'v_mul_f32 {v(vP+k)}, {LOG2E}, {v(vP+k)}')
        allreduce(a, 'v_add_f32', [L_], QUAD, vLN+4)
        a(f'v_rcp_f32 {v(L_)}, {v(L_)}')
        for k in range(16): a(f'v_exp_f32 {v(vP+k)}, {v(vP+k)}')
        for k in range(16): a(f'v_mul_f32 {v(vP+k)}, {v(vP+k)}, {v(L_)}')
        for k in range(16): a(f'v_cvt_pk_bf16_f32 {v(vP+k)}, {v(vP+k)}, {v(vP+k)}')
    def pv(t):
        a.wait_vm(f'V{t}')
        T, tau = t >> 2, t & 3
        q = f'quad_perm:[{tau},{tau},{tau},{tau}] row_mask:0xf bank_mask:0xf'
        for r in range(4):
            a(f'v_and_b32_dpp {v(vA+2*r)}, {v(vP+4*T+r)}, {v(vM0)} {q}')
            a(f'v_and_b32_dpp {v(vA+2*r+1)}, {v(vP+4*T+r)}, {v(vM1)} {q}')
        for r in range(4):
            first = (t == 0 and r == 0)
            a(f'v_mfma_f32_16x16x16_bf16 {v(vO,4)}, {v(vA+2*r,2)}, {ac(16*t+4*r,2)}, {"0" if first else v(vO,4)}')
            a(f'v_mfma_f32_16x16x16_bf16 {v(vO+4,4)}, {v(vA+2*r,2)}, {ac(16*t+4*r+2,2)}, {"0" if first else v(vO+4,4)}')
    def hook_main():
        n = len(stream)
        if todoK and a.idx(f'K{todoK[0]}') <= a.done:
            t = todoK.pop(0)
            qk_read(t); qk_mma(t, 0)
            if t & 3 == 3: s_round(t >> 2)
            if not todoK: stats(); state['stats'] = True
        elif n == pm:
            assert state['stats']
            tag_poll_issue(MLBUF, sT4, 'mlpoll')
        elif n > pm and not state['mlchk'] and a.idx('mlpoll') <= a.done:
            make_p(); state['mlchk'] = True
        elif state['mlchk'] and state['pv'] < 16 and f'V{state["pv"]}' in a.vm and a.vm.count(f'V{state["pv"]}') == 4 and a.idx(f'V{state["pv"]}') <= a.done:
            pv(state['pv']); state['pv'] += 1
    for t in range(v0, 16): loadV(t, hook=hook_main)
    assert not todoK and state['mlchk'], (todoK, state)
    st('lastV')

    def finish_A():
        for t in range(state['pv'], 16): pv(t)
        st('pvdone')
        a(f's_lshl_b32 {s(sT1)}, {s(sWAVE)}, 11'); a(f's_add_u32 {s(sT1)}, {s(sT1)}, {RED}')
        a(f'v_add_u32 {v(vT)}, {s(sT1)}, {v(vL16)}')
        a(f'v_lshrrev_b32 {v(vT+1)}, 2, {v(vLANE)}'); a(f'v_lshlrev_b32 {v(vT+1)}, 4, {v(vT+1)}')
        a(f'v_bfe_u32 {v(vT+2)}, {v(vLANE)}, 1, 1'); a(f'v_lshl_add_u32 {v(vT+1)}, {v(vT+2)}, 10, {v(vT+1)}')
        a(f'v_and_b32 {v(vT+2)}, 1, {v(vLANE)}'); a(f'v_lshl_add_u32 {v(vT+1)}, {v(vT+2)}, 3, {v(vT+1)}')
        a(f's_lshl_b32 {s(sT1)}, {s(sWAVE)}, 8'); a(f's_add_u32 {s(sT2)}, {s(sT1)}, {RED}'); a(f'v_add_u32 {v(vT+1)}, {s(sT2)}, {v(vT+1)}')
        a(f's_lshl_b32 {s(sT2)}, {s(sG)}, 15'); a(f's_add_u32 {s(sT1)}, {s(sT1)}, {s(sT2)}'); a(f's_lshl_b32 {s(sT2)}, {s(sI)}, 10')
        a(f's_add_u32 {s(sT1)}, {s(sT1)}, {s(sT2)}'); a(f's_add_u32 {s(sT1)}, {s(sT1)}, {OBUF}')
        a(f'v_lshlrev_b32 {v(vT+2)}, 2, {v(vLANE)}')
        a(f'ds_write_b128 {v(vT)}, {v(vO,4)}'); a(f'ds_write_b128 {v(vT)}, {v(vO+4,4)} offset:1024')
        a('s_waitcnt lgkmcnt(0)'); a('s_barrier')
        for w in range(4): a(f'ds_read_b64 {v(vA+2*w,2)}, {v(vT+1)} offset:{w*2048}')
        a('s_waitcnt lgkmcnt(2)')
        a(f'v_add_f32 {v(vA)}, {v(vA)}, {v(vA+2)}'); a(f'v_add_f32 {v(vA+1)}, {v(vA+1)}, {v(vA+3)}')
        a('s_waitcnt lgkmcnt(0)')
        a(f'v_add_f32 {v(vA+4)}, {v(vA+4)}, {v(vA+6)}'); a(f'v_add_f32 {v(vA+5)}, {v(vA+5)}, {v(vA+7)}')
        a(f'v_add_f32 {v(vA)}, {v(vA)}, {v(vA+4)}'); a(f'v_add_f32 {v(vA+1)}, {v(vA+1)}, {v(vA+5)}')
        a(f'v_cvt_pk_bf16_f32 {v(vA)}, {v(vA)}, {v(vA+1)}')
        if fast:
            slow, back = a.new('SLOW'), a.new('BACK')
            a(f's_cmp_eq_u32 {s(sSAME)}, 0'); a(f's_cbranch_scc1 {slow}')
            a(f'buffer_store_dword {v(vA)}, {v(vT+2)}, {s(rWS,4)}, {s(sT1)} offen', tag='opub')
            a.label(back)
            def blk():
                stt = a.save()
                a.label(slow)
                a(f'buffer_store_dword {v(vA)}, {v(vT+2)}, {s(rWS,4)}, {s(sT1)} offen sc1')
                a(f's_branch {back}')
                a.restore(stt)
            cold.append(blk)
        else:
            a(f'buffer_store_dword {v(vA)}, {v(vT+2)}, {s(rWS,4)}, {s(sT1)} offen sc1', tag='opub')
        st('opub')

    def ordered_poll(groups, on_valid):
        G = len(groups)
        a(f's_mov_b32 {s(sCNT)}, 0')
        for gi in range(G):
            for reg, txt in groups[gi]: a(txt, tag=f'pg{gi}')
        for gi in range(G):
            chk, ok, retry = a.new('CHK'), a.new('OK'), a.new('RETRY')
            a.label(chk)
            n_after = sum(len(groups[k]) for k in range(gi + 1, G))
            a(f's_waitcnt vmcnt({n_after})')
            a.done = max(a.done, len(a.vm) - 1 - n_after)
            first = True
            for reg, _ in groups[gi]:
                if first:
                    a(f'v_max3_u32 {v(vT)}, {v(reg)}, {v(reg+1)}, {v(reg+2)}'); a(f'v_max_u32 {v(vT)}, {v(vT)}, {v(reg+3)}'); first = False
                else:
                    a(f'v_max3_u32 {v(vT)}, {v(vT)}, {v(reg)}, {v(reg+1)}'); a(f'v_max3_u32 {v(vT)}, {v(vT)}, {v(reg+2)}, {v(reg+3)}')
            a(f'v_cmp_eq_u32 vcc, -1, {v(vT)}')
            a(f's_cbranch_vccnz {retry}')
            a.label(ok)
            on_valid(gi)
            def blk(gi=gi, chk=chk, ok=ok, retry=retry):
                stt = a.save()
                a.label(retry)
                a(f's_add_u32 {s(sCNT)}, {s(sCNT)}, 1'); a(f's_cmp_ge_u32 {s(sCNT)}, {LIMIT}'); a(f's_cbranch_scc1 {ok}')
                for k in range(gi, G):
                    for reg, txt in groups[k]: a(txt)
                a(f's_branch {chk}')
                a.restore(stt)
            cold.append(blk)

    def ready_check(nld, base):
        chk, ok, retry = a.new('CHK'), a.new('OK'), a.new('RETRY')
        a(f's_mov_b32 {s(sCNT)}, 0')
        a.wait_vm('rdy')
        a.label(chk)
        for k in range(nld):
            a(f'v_xor_b32 {v(vT+1)}, {s(sTL)}, {v(base+2*k)}'); a(f'v_xor_b32 {v(vT+2)}, {s(sTH)}, {v(base+2*k+1)}')
            a(f'v_and_b32 {v(vT+2)}, 0xfffffff0, {v(vT+2)}')
            if k == 0: a(f'v_or_b32 {v(vT)}, {v(vT+1)}, {v(vT+2)}')
            else: a(f'v_or3_b32 {v(vT)}, {v(vT)}, {v(vT+1)}, {v(vT+2)}')
        a(f'v_cmp_ne_u32 vcc, 0, {v(vT)}')
        a(f's_cbranch_vccnz {retry}')
        a.label(ok)
        def blk():
            stt = a.save()
            a.label(retry)
            a(f's_add_u32 {s(sCNT)}, {s(sCNT)}, 1'); a(f's_cmp_ge_u32 {s(sCNT)}, {LIMIT}'); a(f's_cbranch_scc1 {ok}')
            ready_issue(nld, base, None)
            a('s_waitcnt vmcnt(0)'); a(f's_branch {chk}')
            a.restore(stt)
        cold.append(blk)
    vRDY = 21
    def ready_issue(nld, base, tag='rdy'):
        for k in range(nld):
            a(f'buffer_load_dwordx2 {v(base+2*k,2)}, {v(vRDY)}, {s(rWS,4)}, 0 offen offset:{k*512 + 8} sc1', tag=tag)
    def ready_addr():
        a(f'v_and_b32 {v(vRDY)}, 7, {v(vLANE)}'); a(f'v_lshlrev_b32 {v(vRDY)}, 13, {v(vRDY)}')
        a(f'v_lshrrev_b32 {v(vT)}, 3, {v(vLANE)}'); a(f'v_lshl_add_u32 {v(vRDY)}, {v(vT)}, 6, {v(vRDY)}'); a(f'v_add_u32 {v(vRDY)}, {QBUF}, {v(vRDY)}')

    a(f's_cmp_lt_u32 {s(sI)}, 16'); a('s_cbranch_scc1 L_B')
    a(f's_cmp_lt_u32 {s(sJ)}, {NC}'); a('s_cbranch_scc1 L_C')
    a(f's_cmp_eq_u32 {s(sI)}, 20'); a('s_cbranch_scc1 L_E')
    base_state = a.save(); pv0 = state['pv']
    finish_A()
    a('s_branch L_FIN')

    a.restore(base_state); state['pv'] = pv0
    a.label('L_B')
    def b_weights():
        srd(a, rA, 12, 4096*512*2)
        a(f'v_lshrrev_b32 {v(vT+3)}, 2, {v(vLANE)}'); a(f'v_lshlrev_b32 {v(vT+3)}, 10, {v(vT+3)}')
        a(f'v_and_b32 {v(vT+4)}, 3, {v(vLANE)}'); a(f'v_lshl_add_u32 {v(vT+3)}, {v(vT+4)}, 4, {v(vT+3)}')
        a(f's_lshl_b32 {s(sT1)}, {s(sG)}, 19'); a(f's_lshl_b32 {s(sT2)}, {s(sWAVE)}, 17'); a(f's_add_u32 {s(sT1)}, {s(sT1)}, {s(sT2)}')
        a(f's_lshl_b32 {s(sT2)}, {s(sI)}, 6'); a(f's_add_u32 {s(sT1)}, {s(sT1)}, {s(sT2)}')
        a(f's_mov_b32 m0, {s(sRING)}')
        for q in range(8):
            a(f'buffer_load_dwordx4 {v(vT+3)}, {s(rA,4)}, {s(sT1)} offen nt lds', tag='wo')
            if q < 7: a(f's_add_u32 {s(sT1)}, {s(sT1)}, 16384'); a('s_add_u32 m0, m0, 1024')
    if not late_w: b_weights()
    finish_A()
    if late_w: b_weights()
    vW, vOB, vY = 32, 64, 96
    vBA, vBR, vBW = 21, 22, 23
    a(f'v_lshlrev_b32 {v(vBA)}, 10, {v(vN4)}'); a(f'v_lshl_add_u32 {v(vBA)}, {v(vS4)}, 4, {v(vBA)}')
    a(f's_lshl_b32 {s(sT1)}, {s(sG)}, 15'); a(f's_lshl_b32 {s(sT2)}, {s(sWAVE)}, 8'); a(f's_add_u32 {s(sT1)}, {s(sT1)}, {s(sT2)}')
    a(f's_add_u32 {s(sT1)}, {s(sT1)}, {OBUF}'); a(f's_add_u32 {s(sT2)}, {s(sT1)}, 16384')
    a(f'v_lshrrev_b32 {v(vT+1)}, 2, {v(vN4)}'); a(f'v_lshlrev_b32 {v(vT+1)}, 6, {v(vT+1)}'); a(f'v_lshl_add_u32 {v(vT+1)}, {v(vS4)}, 9, {v(vT+1)}')
    a(f'v_and_b32 {v(vT+2)}, 3, {v(vLANE)}'); a(f'v_lshl_add_u32 {v(vT+1)}, {v(vT+2)}, 3, {v(vT+1)}'); a(f'v_add_u32 {v(vT+1)}, {s(sRING)}, {v(vT+1)}')
    a(f'v_lshlrev_b32 {v(vBW)}, 7, {v(vT+2)}'); a(f'v_lshl_add_u32 {v(vBW)}, {v(vS4)}, 4, {v(vBW)}')
    a(f'v_bfe_u32 {v(vT+2)}, {v(vLANE)}, 2, 1'); a(f'v_lshl_add_u32 {v(vBW)}, {v(vT+2)}, 6, {v(vBW)}')
    a(f's_lshl_b32 {s(sT3)}, {s(sWAVE)}, 9'); a(f's_add_u32 {s(sT3)}, {s(sT3)}, {RED + 0}'); a(f'v_add_u32 {v(vBW)}, {s(sT3)}, {v(vBW)}')
    a(f's_lshl_b32 {s(sT3)}, {s(sWAVE)}, 7'); a(f's_add_u32 {s(sT3)}, {s(sT3)}, {RED + 0}'); a(f'v_add_u32 {v(vBR)}, {s(sT3)}, {v(vL16)}')
    a.wait_vm('wo')
    st('wok')
    for ct in range(2):
        for j in range(4):
            a(f'ds_read_b64_tr_b16 {v(vW+16*ct+4*j,2)}, {v(vT+1)} offset:{j*2048 + ct*32}')
            a(f'ds_read_b64_tr_b16 {v(vW+16*ct+4*j+2,2)}, {v(vT+1)} offset:{j*2048 + ct*32 + 256}')
    a('s_waitcnt lgkmcnt(0)'); a('s_barrier')
    groups = [[(vOB+16*u+4*j, f'buffer_load_dwordx4 {v(vOB+16*u+4*j,4)}, {v(vBA)}, {s(rWS,4)}, {s(sT1+u)} offen offset:{j*64} sc1') for j in range(4)] for u in range(2)]
    def b_valid(u):
        for j in range(4):
            for ct in range(2):
                c = '0' if (u == 0 and j == 0) else v(vY+4*ct, 4)
                a(f'v_mfma_f32_16x16x32_bf16 {v(vY+4*ct,4)}, {v(vW+16*ct+4*j,4)}, {v(vOB+16*u+4*j,4)}, {c}')
    ordered_poll(groups, b_valid)
    st('ok')
    a(f's_lshl_b32 {s(sT1)}, {s(sG)}, 13'); a(f's_lshl_b32 {s(sT2)}, {s(sWAVE)}, 11'); a(f's_add_u32 {s(sT1)}, {s(sT1)}, {s(sT2)}')
    a(f's_lshl_b32 {s(sT2)}, {s(sI)}, 7'); a(f's_add_u32 {s(sT1)}, {s(sT1)}, {s(sT2)}'); a(f's_add_u32 {s(sT1)}, {s(sT1)}, {YBUF}')
    a('s_mov_b32 vcc_lo, 0xf0f0f0f0'); a('s_mov_b32 vcc_hi, 0xf0f0f0f0')
    allreduce(a, 'v_add_f32', [vY+k for k in range(8)], ['row_ror:8', 'row_ror:4'], 0)
    for k in range(4): a(f'v_cndmask_b32 {v(vY+k)}, {v(vY+k)}, {v(vY+4+k)}, vcc')
    a('s_mov_b32 exec_lo, 0x00ff00ff'); a('s_mov_b32 exec_hi, 0x00ff00ff')
    a(f'ds_write_b128 {v(vBW)}, {v(vY,4)}')
    a('s_mov_b64 exec, -1')
    a('s_waitcnt lgkmcnt(0)'); a('s_barrier')
    for w in range(4): a(f'ds_read_b128 {v(vOB+4*w,4)}, {v(vBR)} offset:{w*512}')
    a('s_waitcnt lgkmcnt(2)')
    for k in range(4): a(f'v_add_f32 {v(vOB+k)}, {v(vOB+k)}, {v(vOB+4+k)}')
    a('s_waitcnt lgkmcnt(0)')
    for k in range(4): a(f'v_add_f32 {v(vOB+8+k)}, {v(vOB+8+k)}, {v(vOB+12+k)}')
    for k in range(4): a(f'v_add_f32 {v(vOB+k)}, {v(vOB+k)}, {v(vOB+8+k)}')
    a('s_mov_b64 exec, 0xff')
    a(f'buffer_store_dwordx4 {v(vOB,4)}, {v(vL16)}, {s(rWS,4)}, {s(sT1)} offen sc1', tag='ypub')
    a('s_mov_b64 exec, -1')
    st('pub')
    a('s_branch L_FIN')

    a.restore(base_state); state['pv'] = pv0
    a.label('L_C')
    vW1, vW2, vYG, vH = 32, 96, 160, 224
    vX2, vB1, vRD = 240, 244, 246
    W2L = 65536
    def c_weights():
        ready_addr(); ready_issue(2, vRD)
        srd(a, rA, 16, 512*1792*2); srd(a, rB, 20, 1792*512*2); srd(a, rC, 18, 1792*2)
        a(f'v_lshlrev_b32 {v(vT+3)}, 3, {v(vLANE)}'); a(f's_lshl_b32 {s(sT1)}, {s(sWAVE)}, 10')
        a(f'buffer_load_dwordx2 {v(vX2,2)}, {v(vT+3)}, {s(rX,4)}, {s(sT1)} offen', tag='cx')
        a(f'buffer_load_dwordx2 {v(vX2+2,2)}, {v(vT+3)}, {s(rX,4)}, {s(sT1)} offen offset:512', tag='cx')
        a(f'v_lshlrev_b32 {v(vT+3)}, 3, {v(vS4)}'); a(f's_lshl_b32 {s(sT1)}, {s(sJ)}, 7'); a(f's_lshl_b32 {s(sT2)}, {s(sWAVE)}, 5'); a(f's_add_u32 {s(sT1)}, {s(sT1)}, {s(sT2)}')
        a(f'buffer_load_dwordx2 {v(vB1,2)}, {v(vT+3)}, {s(rC,4)}, {s(sT1)} offen', tag='cb')
        a(f'v_lshrrev_b32 {v(vT+3)}, 3, {v(vLANE)}'); a(f'v_mul_u32_u24 {v(vT+3)}, 3584, {v(vT+3)}')
        a(f'v_and_b32 {v(vT+4)}, 7, {v(vLANE)}'); a(f'v_lshl_add_u32 {v(vT+3)}, {v(vT+4)}, 4, {v(vT+3)}')
        a(f's_mul_i32 {s(sT1)}, {s(sWAVE)}, {128*3584}'); a(f's_lshl_b32 {s(sT2)}, {s(sJ)}, 7'); a(f's_add_u32 {s(sT1)}, {s(sT1)}, {s(sT2)}')
        a(f's_lshl_b32 {s(sT2)}, {s(sWAVE)}, 14'); a(f's_mov_b32 m0, {s(sT2)}')
        for q in range(16):
            a(f'buffer_load_dwordx4 {v(vT+3)}, {s(rA,4)}, {s(sT1)} offen nt lds', tag='w1')
            a(f's_add_u32 {s(sT1)}, {s(sT1)}, {8*3584}'); a('s_add_u32 m0, m0, 1024')
        a(f'v_lshlrev_b32 {v(vT+3)}, 10, {v(vS4)}'); a(f'v_lshl_add_u32 {v(vT+3)}, {v(vN4)}, 4, {v(vT+3)}')
        a(f's_lshl_b32 {s(sT1)}, {s(sJ)}, 16'); a(f's_lshl_b32 {s(sT3)}, {s(sWAVE)}, 8'); a(f's_add_u32 {s(sT1)}, {s(sT1)}, {s(sT3)}')
        a(f's_add_u32 m0, {s(sT2)}, {W2L}')
        for q in range(16):
            a(f'buffer_load_dwordx4 {v(vT+3)}, {s(rB,4)}, {s(sT1)} offen nt lds', tag='w2')
            if q < 15: a(f's_add_u32 {s(sT1)}, {s(sT1)}, 4096'); a('s_add_u32 m0, m0, 1024')
    if not late_w: c_weights()
    finish_A()
    if late_w: c_weights()
    vC1, vC2, vHW, vHR, vRWr, vRR4 = 8, 9, 10, 11, 12, 13
    a(f'v_lshrrev_b32 {v(vT+1)}, 2, {v(vN4)}'); a(f'v_and_b32 {v(vT+2)}, 3, {v(vLANE)}')
    a(f'v_lshlrev_b32 {v(vC1)}, 10, {v(vS4)}'); a(f'v_lshl_add_u32 {v(vC1)}, {v(vT+1)}, 7, {v(vC1)}'); a(f'v_lshl_add_u32 {v(vC1)}, {v(vT+2)}, 3, {v(vC1)}')
    a(f's_lshl_b32 {s(sT1)}, {s(sWAVE)}, 5'); a(f'v_add_u32 {v(vC1)}, {s(sT1)}, {v(vC1)}')
    a(f'v_lshlrev_b32 {v(vC2)}, 11, {v(vS4)}'); a(f'v_lshl_add_u32 {v(vC2)}, {v(vT+1)}, 8, {v(vC2)}'); a(f'v_lshl_add_u32 {v(vC2)}, {v(vT+2)}, 3, {v(vC2)}')
    a(f's_lshl_b32 {s(sT2)}, {s(sWAVE)}, 14'); a(f's_add_u32 {s(sT2)}, {s(sT2)}, {W2L}'); a(f'v_add_u32 {v(vC2)}, {s(sT2)}, {v(vC2)}')
    a(f's_mul_i32 {s(sT2)}, {s(sWAVE)}, {XNS}'); a(f's_add_u32 {s(sT2)}, {s(sT2)}, {XN}'); a(f'v_lshl_add_u32 {v(vHW)}, {v(vLANE)}, 3, {s(sT2)}')
    a(f'v_mul_u32_u24 {v(vHR)}, {XNS}, {v(vT+2)}'); a(f'v_lshl_add_u32 {v(vHR)}, {v(vS4)}, 4, {v(vHR)}'); a(f'v_add_u32 {v(vHR)}, {XN}, {v(vHR)}')
    a(f'v_mul_u32_u24 {v(vRWr)}, 144, {v(vT+2)}'); a(f'v_lshl_add_u32 {v(vT+3)}, {v(vS4)}, 4, {v(vRWr)}'); a(f'v_add_u32 {v(vT+3)}, {RED}, {v(vT+3)}')
    a(f'v_lshl_add_u32 {v(vRWr)}, {v(vS4)}, 3, {v(vRWr)}'); a(f's_add_u32 {s(sT1)}, {s(sT1)}, {RED}'); a(f'v_add_u32 {v(vRWr)}, {s(sT1)}, {v(vRWr)}')
    a(f'v_mov_b32 {v(vT+4)}, {RED + 1024}')
    for rho in range(4):
        m = 0x000f000f << (4*rho)
        a(f's_mov_b32 vcc_lo, {hex(m)}'); a(f's_mov_b32 vcc_hi, {hex(m)}')
        a(f'v_cndmask_b32 {v(vRR4+rho)}, {v(vT+4)}, {v(vT+3)}, vcc')
    vPO = 17
    a(f'v_lshlrev_b32 {v(vPO)}, 11, {v(vT+2)}'); a(f'v_lshl_add_u32 {v(vPO)}, {v(vT+1)}, 6, {v(vPO)}'); a(f'v_lshl_add_u32 {v(vPO)}, {v(vS4)}, 4, {v(vPO)}')
    ready_check(2, vRD)
    a.wait_vm('w2')
    st('wok')
    a('s_barrier')
    for k in range(4): a(f'v_mov_b32 {v(vH+k)}, 0')
    a(f'v_add_u32 {v(vT+3)}, {RED + 1024}, {v(vL16)}')
    a(f'ds_write_b128 {v(vT+3)}, {v(vH,4)}')
    for k in range(16):
        a(f'ds_read_b64_tr_b16 {v(vW1+4*k,2)}, {v(vC1)} offset:{k*4096}')
        a(f'ds_read_b64_tr_b16 {v(vW1+4*k+2,2)}, {v(vC1)} offset:{k*4096 + 512}')
        if k % 4 == 3: a('s_waitcnt lgkmcnt(0)')
    for ct in range(8):
        for k in range(2):
            a(f'ds_read_b64_tr_b16 {v(vW2+8*ct+4*k,2)}, {v(vC2)} offset:{k*8192 + ct*32}')
            a(f'ds_read_b64_tr_b16 {v(vW2+8*ct+4*k+2,2)}, {v(vC2)} offset:{k*8192 + ct*32 + 1024}')
        if ct % 2 == 1: a('s_waitcnt lgkmcnt(0)')
    vXF, vBF = 248, 228
    for k in range(4): unpack(a, vXF+2*k, vX2+k)
    unpack(a, vX2, vB1); unpack(a, vX2+2, vB1+1)
    for gi in range(8):
        a(f's_lshl_b32 {s(sQM+gi)}, {s(sWAVE)}, 11'); a(f's_add_u32 {s(sQM+gi)}, {s(sQM+gi)}, {YBUF + order_y[gi]*8192}')
    groups = [[(vYG+8*gi+4*h, f'buffer_load_dwordx4 {v(vYG+8*gi+4*h,4)}, {v(vL16)}, {s(rWS,4)}, {s(sQM+gi)} offen offset:{h*1024} sc1') for h in range(2)] for gi in range(8)]
    def c_valid(gi):
        if gi == 0: return
        for k in range(4): a(f'v_pk_add_f32 {v(vYG+2*k,2)}, {v(vYG+2*k,2)}, {v(vYG+8*gi+2*k,2)}')
    ordered_poll(groups, c_valid)
    st('ok')
    tl = vYG + 16
    for k in range(4): a(f'v_cvt_pk_bf16_f32 {v(tl+k)}, {v(vYG+2*k)}, {v(vYG+2*k+1)}')
    for k in range(4): unpack(a, vYG+2*k, tl+k)
    for k in range(4): a(f'v_pk_add_f32 {v(vYG+2*k,2)}, {v(vYG+2*k,2)}, {v(vXF+2*k,2)}')
    for k in range(4): a(f'v_cvt_pk_bf16_f32 {v(tl+k)}, {v(vYG+2*k)}, {v(vYG+2*k+1)}')
    for k in range(4): unpack(a, vYG+2*k, tl+k)
    layernorm(a, vYG, vYG+8, tl)
    a(f'ds_write_b64 {v(vHW)}, {v(vYG+8,2)}'); a(f'ds_write_b64 {v(vHW)}, {v(vYG+10,2)} offset:512')
    a('s_waitcnt lgkmcnt(0)'); a('s_barrier')
    st('ln2')
    for k in range(12): a(f'ds_read_b128 {v(vYG+4*k,4)}, {v(vHR)} offset:{k*64}')
    for k in range(16):
        a(f's_waitcnt lgkmcnt({min(15-k, 11)})')
        if k < 4: a(f'ds_read_b128 {v(vYG+4*(k+12),4)}, {v(vHR)} offset:{(k+12)*64}')
        a(f'v_mfma_f32_16x16x32_bf16 {v(vH,4)}, {v(vW1+4*k,4)}, {v(vYG+4*k,4)}, {"0" if k == 0 else v(vH,4)}')
    a(f's_lshl_b32 {s(sT1)}, {s(sJ)}, 13'); a(f's_lshl_b32 {s(sT2)}, {s(sWAVE)}, 9'); a(f's_add_u32 {s(sT1)}, {s(sT1)}, {s(sT2)}'); a(f's_add_u32 {s(sT1)}, {s(sT1)}, {PBUF}')
    def rnd4(b):
        a(f'v_cvt_pk_bf16_f32 {v(b+4)}, {v(b)}, {v(b+1)}'); a(f'v_cvt_pk_bf16_f32 {v(b+5)}, {v(b+2)}, {v(b+3)}')
        unpack(a, b, b+4); unpack(a, b+2, b+5)
    rnd4(vH)
    for k in range(4): a(f'v_add_f32 {v(vH+k)}, {v(vH+k)}, {v(vX2+k)}')
    rnd4(vH)
    for k in range(4): a(f'v_max_f32 {v(vH+k)}, 0, {v(vH+k)}')
    for k in range(4): a(f'v_mul_f32 {v(vH+k)}, {v(vH+k)}, {v(vH+k)}')
    a(f'v_cvt_pk_bf16_f32 {v(vH+4)}, {v(vH)}, {v(vH+1)}'); a(f'v_cvt_pk_bf16_f32 {v(vH+5)}, {v(vH+2)}, {v(vH+3)}')
    a('s_mov_b32 exec_lo, 0x000f000f'); a('s_mov_b32 exec_hi, 0x000f000f')
    a(f'ds_write_b64 {v(vRWr)}, {v(vH+4,2)}')
    a('s_mov_b64 exec, -1')
    a('s_waitcnt lgkmcnt(0)'); a('s_barrier')
    for rho in range(4):
        for k in range(2): a(f'ds_read_b128 {v(vYG+8*rho+4*k,4)}, {v(vRR4+rho)} offset:{k*64}')
    n = 0
    for rho in range(4):
        for k in range(2):
            a(f's_waitcnt lgkmcnt({7-n})'); n += 1
            for kk in range(2):
                c = '0' if (rho == 0 and k == 0) else v(vH+4*kk, 4)
                a(f'v_mfma_f32_16x16x32_bf16 {v(vH+4*kk,4)}, {v(vW2+8*(4*kk+rho)+4*k,4)}, {v(vYG+8*rho+4*k,4)}, {c}')
    a(f'buffer_store_dwordx4 {v(vH,4)}, {v(vPO)}, {s(rWS,4)}, {s(sT1)} offen sc1', tag='ppub')
    a(f'buffer_store_dwordx4 {v(vH+4,4)}, {v(vPO)}, {s(rWS,4)}, {s(sT1)} offen offset:256 sc1', tag='ppub')
    st('pub')
    a('s_branch L_FIN')

    a.restore(base_state); state['pv'] = pv0
    a.label('L_E')
    vEY, vEP, vEX, vEB, vERD, vEA = 32, 48, 80, 82, 84, 92
    sE = sJ
    ready_addr(); ready_issue(3, vERD)
    a(f's_lshl_b32 {s(sE)}, {s(sG)}, 2'); a(f's_add_u32 {s(sE)}, {s(sE)}, {s(sWAVE)}')
    srd(a, rB, 24, 4096); srd(a, rC, 22, 1024)
    a(f'v_lshlrev_b32 {v(vEA)}, 3, {v(vN4)}')
    a(f's_lshl_b32 {s(sT1)}, {s(sE)}, 7'); a(f's_and_b32 {s(sT2)}, {s(sT1)}, 1023')
    a(f'buffer_load_dwordx2 {v(vEX,2)}, {v(vEA)}, {s(rX,4)}, {s(sT1)} offen', tag='ex')
    a(f'buffer_load_dwordx2 {v(vEB,2)}, {v(vEA)}, {s(rC,4)}, {s(sT2)} offen', tag='ex')
    finish_A()
    a(f'v_lshlrev_b32 {v(vEA+1)}, 13, {v(vS4)}'); a(f'v_lshl_add_u32 {v(vEA+1)}, {v(vN4)}, 4, {v(vEA+1)}')
    ready_check(3, vERD)
    a(f's_lshl_b32 {s(sT1)}, {s(sE)}, 8')
    for k in range(2): a(f's_add_u32 {s(sQM+k)}, {s(sT1)}, {YBUF + k*32768}')
    groups = [[(vEY+4*k, f'buffer_load_dwordx4 {v(vEY+4*k,4)}, {v(vEA+1)}, {s(rWS,4)}, {s(sQM+k)} offen sc1') for k in range(2)]]
    ordered_poll(groups, lambda gi: None)
    for k in range(4): a(f'v_add_f32 {v(vEY+k)}, {v(vEY+k)}, {v(vEY+4+k)}')
    allreduce(a, 'v_add_f32', [vEY+k for k in range(4)], ['p16', 'p32'], vEY+4)
    rnd4(vEY)
    unpack(a, vEY+8, vEX); unpack(a, vEY+10, vEX+1)
    for k in range(4): a(f'v_add_f32 {v(vEY+k)}, {v(vEY+k)}, {v(vEY+8+k)}')
    rnd4(vEY)
    unpack(a, vEY+8, vEB); unpack(a, vEY+10, vEB+1)
    for k in range(7): a(f's_add_u32 {s(sQM+k)}, {s(sT1)}, {PBUF + k*32768}')
    a(f's_lshl_b32 {s(sT1)}, {s(sE)}, 7')
    groups = [[(vEP+4*k, f'buffer_load_dwordx4 {v(vEP+4*k,4)}, {v(vEA+1)}, {s(rWS,4)}, {s(sQM+k)} offen sc1') for k in range(7)]]
    ordered_poll(groups, lambda gi: None)
    st('ok')
    for (x, y) in ((0, 1), (2, 3), (4, 5), (0, 2), (4, 6), (0, 4)):
        for k in range(2): a(f'v_pk_add_f32 {v(vEP+4*x+2*k,2)}, {v(vEP+4*x+2*k,2)}, {v(vEP+4*y+2*k,2)}')
    allreduce(a, 'v_add_f32', [vEP+k for k in range(4)], ['p16', 'p32'], vEP+4)
    rnd4(vEP)
    for k in range(4): a(f'v_add_f32 {v(vEP+k)}, {v(vEP+k)}, {v(vEY+8+k)}')
    rnd4(vEP)
    for k in range(4): a(f'v_add_f32 {v(vEP+k)}, {v(vEP+k)}, {v(vEY+k)}')
    a(f'v_cvt_pk_bf16_f32 {v(vEP)}, {v(vEP)}, {v(vEP+1)}'); a(f'v_cvt_pk_bf16_f32 {v(vEP+1)}, {v(vEP+2)}, {v(vEP+3)}')
    a('s_mov_b64 exec, 0xffff')
    a(f'buffer_store_dwordx2 {v(vEP,2)}, {v(vEA)}, {s(rB,4)}, {s(sT1)} offen', tag='out')
    a(f's_cmp_lg_u32 {s(sE)}, 0'); a('s_cbranch_scc1 L_E2')
    a('s_mov_b64 exec, 1')
    a(f'v_mov_b32 {v(vEP+4)}, s30'); a(f'v_mov_b32 {v(vEP+5)}, s31')
    a(f'buffer_store_dwordx2 {v(vEP+4,2)}, {v(vEA)}, {s(rWS,4)}, 0 offen offset:{EPOCH}')
    a.label('L_E2')
    a('s_mov_b64 exec, -1')
    if stamps:
        a('s_waitcnt vmcnt(0)')
    st('pub')

    a.label('L_FIN')
    if stamps:
        a(f's_lshl_b32 {s(sT1)}, s2, 2'); a(f's_add_u32 {s(sT1)}, {s(sT1)}, {s(sWAVE)}'); a(f's_lshl_b32 {s(sT1)}, {s(sT1)}, 7'); a(f's_add_u32 {s(sT1)}, {s(sT1)}, {STAMP}')
        a('s_mov_b64 exec, 1'); a('v_mov_b32 v3, 0')
        for k in range(13):
            a(f'v_mov_b32 v4, {s(sST+k)}'); a(f'buffer_store_dword v4, v3, {s(rWS,4)}, {s(sT1)} offen offset:{4*k}')
    a('s_endpgm')
    for blk in cold: blk()
    a.label('L_END')
    body = a.finish()
    gen.stamp_names = list(stamp_regs)
    hdr = open('cdna_kernels/' + KN + '.s.ref').read().split('; Override launch')[0]
    txt = hdr + f'''; @launch grid=(256,1,1) block=(256,1,1) lds={LDS_TOTAL}
.amdgcn_target "amdgcn-amd-amdhsa--gfx950"
.text
.globl {KN}_kernel
.p2align 8
.type {KN}_kernel,@function
{KN}_kernel:
{body}
    s_endpgm
.section .rodata,"a"
.p2align 6
.amdhsa_kernel {KN}_kernel
  .amdhsa_next_free_vgpr 512
  .amdhsa_next_free_sgpr 102
  .amdhsa_accum_offset 256
  .amdhsa_group_segment_fixed_size 0
  .amdhsa_kernarg_size 104
  .amdhsa_user_sgpr_count 2
  .amdhsa_user_sgpr_kernarg_segment_ptr 1
  .amdhsa_system_sgpr_workgroup_id_x 1
  .amdhsa_float_denorm_mode_32 3
.end_amdhsa_kernel
'''
    return txt

if __name__ == '__main__':
    out = sys.argv[1] if len(sys.argv) > 1 else 'cdna_kernels/' + KN + '.s'
    open(out, 'w').write(gen())
    print('written', out)
```
